```python
import torch

def _softmax(x, axis=-1):
    return torch.softmax(x, dim=axis)

def _gelu(x):
    return torch.nn.functional.gelu(x, approximate='tanh')

def _silu(x):
    return torch.nn.functional.silu(x)

def _sigmoid(x):
    return torch.sigmoid(x)

def _layernorm(x, axis=-1, eps=1e-05):
    m = x.mean(dim=axis, keepdim=True)
    v = x.var(dim=axis, keepdim=True, unbiased=False)
    return (x - m) / torch.sqrt(v + eps)

def _scatter_add(tgt, idx, src, axis=0):
    return tgt.clone().index_add_(axis, idx, src)

def _segment_sum(src, seg, n):
    out = torch.zeros((n,) + src.shape[1:], dtype=src.dtype)
    return out.index_add_(0, seg, src)

def _pad(x, pw):
    flat = tuple((v for pair in reversed(pw) for v in pair))
    return torch.nn.functional.pad(x, flat)
kernel_name = 'parallel_sum__ssm_conv_s4__mixer_gmlp__prompt'

def setup_inputs():

    _w = lambda a: (lambda t: t.to(torch.bfloat16) if t.is_floating_point() else t)(torch.as_tensor(a))

    def _A_setup():
        B, L, D, N = (1, 2048, 576, 128)
        A_re = -(lambda _x: torch.exp(torch.as_tensor(_x)))((lambda *s: torch.randn(*s, dtype=torch.bfloat16) * 3.2)(D, N))
        A_im = torch.pi * (lambda *s: torch.randn(*s, dtype=torch.bfloat16) * 0.2)(D, N)
        B_re = (lambda *s: torch.randn(*s, dtype=torch.bfloat16) * 0.8)(D, N)
        B_im = (lambda *s: torch.randn(*s, dtype=torch.bfloat16) * 0.8)(D, N)
        C_re = (lambda *s: torch.randn(*s, dtype=torch.bfloat16) * 0.8)(D, N)
        C_im = (lambda *s: torch.randn(*s, dtype=torch.bfloat16) * 0.8)(D, N)
        log_dt = (lambda *s: torch.randn(*s, dtype=torch.bfloat16) * 0.2)(D) * 0.5 - 4.0
        Dskip = (lambda *s: torch.randn(*s, dtype=torch.bfloat16) * 1.6)(D)
        return {'u': _w((lambda *s: torch.randn(*s, dtype=torch.bfloat16) * 0.05)(B, L, D)), 'A_re': _w(A_re), 'A_im': _w(A_im), 'B_re': _w(B_re), 'B_im': _w(B_im), 'C_re': _w(C_re), 'C_im': _w(C_im), 'log_dt': _w(log_dt), 'Dskip': _w(Dskip)}
    _A_in = _A_setup()

    def _B_setup():
        B, S, D, F = (1, 2048, 576, 4608)
        Fh = F // 2
        return {'x': _w((lambda *s: torch.randn(*s, dtype=torch.bfloat16) * 0.05)(B, S, D)), 'w_in': _w((lambda *s: torch.randn(*s, dtype=torch.bfloat16) * 0.4)(D, 2 * Fh)), 'w_sp': _w(0.01 * (lambda *s: torch.randn(*s, dtype=torch.bfloat16) * 0.4)(S, S)), 'b_sp': _w(1.0 + 0.01 * (lambda *s: torch.randn(*s, dtype=torch.bfloat16) * 0.05)(S)), 'w_out': _w((lambda *s: torch.randn(*s, dtype=torch.bfloat16) * 0.05)(Fh, D))}
    _B_in = _B_setup()
    return {'A_u': _A_in['u'], 'A_A_re': _A_in['A_re'], 'A_A_im': _A_in['A_im'], 'A_B_re': _A_in['B_re'], 'A_B_im': _A_in['B_im'], 'A_C_re': _A_in['C_re'], 'A_C_im': _A_in['C_im'], 'A_log_dt': _A_in['log_dt'], 'A_Dskip': _A_in['Dskip'], 'B_x': _B_in['x'], 'B_w_in': _B_in['w_in'], 'B_w_sp': _B_in['w_sp'], 'B_b_sp': _B_in['b_sp'], 'B_w_out': _B_in['w_out']}

def reference(A_u, A_A_re, A_A_im, A_B_re, A_B_im, A_C_re, A_C_im, A_log_dt, A_Dskip, B_x, B_w_in, B_w_sp, B_b_sp, B_w_out):

    def _A_ref(u, A_re, A_im, B_re, B_im, C_re, C_im, log_dt, Dskip):
        Bsz, L, D = u.shape
        dt = torch.exp(log_dt)[:, None]
        A = A_re + 1j * A_im
        Bc = B_re + 1j * B_im
        Cc = C_re + 1j * C_im
        logdA = dt * A
        dB = dt * Bc
        l = (lambda x, dt: x.to(dt))(torch.arange(L), A_re.dtype)
        P = torch.exp(logdA[:, :, None] * l[None, None, :])
        K = torch.einsum('dn,dnl,dn->dl', Cc, P, dB).real
        L2 = 2 * L
        Kp = _pad(K, ((0, 0), (0, L)))
        up = (lambda x, *d: x.permute(*d))(u, 0, 2, 1)
        up = _pad(up, ((0, 0), (0, 0), (0, L)))
        Kf = (lambda x, axes=(-2, -1): torch.fft.rfft2(x.float(), dim=axes))(Kp[:, None, :], axes=(-2, -1))
        Uf = (lambda x, axes=(-2, -1): torch.fft.rfft2(x.float(), dim=axes))(up[:, :, None, :], axes=(-2, -1))
        Yf = Uf * Kf[None, :, :, :]
        y = (lambda x, s, axes=(-2, -1): torch.fft.irfft2(x, s=s, dim=axes).to(torch.bfloat16))(Yf, (1, L2), axes=(-2, -1))[:, :, 0, :L]
        y = (lambda x, *d: x.permute(*d))(y, 0, 2, 1) + u * Dskip[None, None, :]
        return y

    def _B_ref(x, w_in, w_sp, b_sp, w_out):
        B, S, D = x.shape
        F = w_in.shape[-1]
        Fh = F // 2
        z = _gelu(torch.einsum('bsd,df->bsf', x, w_in))
        z1 = z[..., :Fh].clone()
        z2 = _layernorm(z[..., Fh:], axis=-1)
        g = torch.einsum('ts,bsf->btf', w_sp, z2) + b_sp[None, :, None]
        return torch.einsum('bsf,fd->bsd', z1 * g, w_out)
    x = A_u
    xn = _layernorm(x, axis=-1)
    return x + _A_ref(xn, A_A_re, A_A_im, A_B_re, A_B_im, A_C_re, A_C_im, A_log_dt, A_Dskip) + _B_ref(xn, B_w_in, B_w_sp, B_b_sp, B_w_out)
```

```python
import re

REG_RE = re.compile(r'(?<![\w.])(-?)(?:abs\()?([vas])(\d+|\[(\d+):(\d+)\])')
TRANS = ('v_exp_f32', 'v_log_f32', 'v_rcp_f32', 'v_rsq_f32', 'v_sqrt_f32', 'v_sin_f32', 'v_cos_f32', 'v_rcp_iflag_f32')

def regs_of(tok):
    out = set()
    tok = tok.strip()
    for m in REG_RE.finditer(tok):
        kind = m.group(2)
        if m.group(4) is not None:
            for r in range(int(m.group(4)), int(m.group(5)) + 1):
                out.add((kind, r))
        else:
            out.add((kind, int(m.group(3))))
    if re.search(r'\bvcc\b', tok): out |= {('s', 'vcc')}
    if re.search(r'\bexec\b', tok): out |= {('s', 'exec')}
    if re.search(r'\bm0\b', tok): out |= {('s', 'm0')}
    return out

def split_ops(rest):
    ops = []; depth = 0; cur = ''
    for ch in rest:
        if ch == '[' or ch == '(': depth += 1
        if ch == ']' or ch == ')': depth -= 1
        if ch == ',' and depth == 0:
            ops.append(cur.strip()); cur = ''
        else:
            cur += ch
    if cur.strip(): ops.append(cur.strip())
    return ops

class Ins:
    __slots__ = ('text', 'op', 'dst', 'src', 'cls', 'label', 'target', 'srcc', 'srcab', 'note')
    def __init__(self, text):
        self.text = text; self.label = None; self.target = None
        self.dst = set(); self.src = set(); self.srcc = set(); self.srcab = set()
        t = text.split(';')[0].strip()
        if t.endswith(':'):
            self.label = t[:-1]; self.op = ''; self.cls = 'label'; return
        if not t or t.startswith('.'):
            self.op = ''; self.cls = 'none'; return
        parts = t.split(None, 1)
        op = parts[0]; rest = parts[1] if len(parts) > 1 else ''
        self.op = op
        ops = split_ops(rest)
        R = [regs_of(o) for o in ops]
        allr = set().union(*R) if R else set()
        if op.startswith('v_mfma'):
            self.cls = 'mfma'; self.dst = R[0]; self.srcab = R[1] | R[2]; self.srcc = R[3]; self.src = R[1] | R[2] | R[3]
        elif op.startswith('ds_'):
            self.cls = 'ds'
            if op.startswith('ds_read') or op.startswith('ds_bpermute') or op.startswith('ds_swizzle') or '_rtn' in op:
                self.dst = R[0]; self.src = set().union(*R[1:])
            else:
                self.src = allr
        elif op.startswith('buffer_') or op.startswith('global_'):
            self.cls = 'vmem'
            islds = re.search(r'\blds\b', rest) is not None
            if 'load' in op and not islds:
                self.dst = R[0]; self.src = set().union(*R[1:])
            elif 'atomic' in op and re.search(r'\bsc0\b', rest):
                self.dst = R[0]; self.src = allr
            else:
                self.src = allr
                if islds: self.src = self.src | {('s', 'm0')}
            if op in ('buffer_inv', 'buffer_wbl2'): self.src = set()
        elif op.startswith('s_load') or op.startswith('s_buffer_load') or op in ('s_memtime', 's_memrealtime'):
            self.cls = 'smem'; self.dst = R[0]; self.src = set().union(*R[1:]) if len(R) > 1 else set()
        elif op.startswith('s_'):
            self.cls = 'salu'
            if op.startswith('s_cbranch') or op == 's_branch':
                self.cls = 'branch'; self.target = ops[0]
                if 'vcc' in op: self.src = {('s', 'vcc')}
                if 'exec' in op: self.src = {('s', 'exec')}
            elif op.startswith('s_cmp') or op in ('s_waitcnt', 's_barrier', 's_nop', 's_setprio', 's_endpgm', 's_sleep', 's_bitcmp0_b32', 's_bitcmp1_b32'):
                self.src = allr
            else:
                self.dst = R[0]; self.src = set().union(*R[1:]) if len(R) > 1 else set()
                if 'saveexec' in op: self.dst = self.dst | {('s', 'exec')}; self.src = self.src | {('s', 'exec')}
                if op in ('s_addk_i32', 's_mulk_i32'): self.src = self.src | R[0]
        elif op.startswith('v_'):
            self.cls = 'valu'
            base = re.sub(r'_(e32|e64|dpp|sdwa)$', '', op)
            self.op = base
            if base.startswith('v_permlane') and 'swap' in base:
                self.dst = R[0] | R[1]; self.src = R[0] | R[1]
            elif base.startswith('v_cmpx'):
                self.dst = R[0] | {('s', 'exec')}; self.src = set().union(*R[1:])
            elif base in ('v_add_co_u32', 'v_sub_co_u32', 'v_addc_co_u32', 'v_subb_co_u32', 'v_div_scale_f32', 'v_mad_u64_u32'):
                self.dst = R[0] | R[1]; self.src = set().union(*R[2:])
            else:
                self.dst = R[0]; self.src = set().union(*R[1:]) if len(R) > 1 else set()
                if base in ('v_fmac_f32', 'v_dot2c_f32_bf16', 'v_pk_fmac_f16', 'v_writelane_b32') or 'row_' in rest or 'quad_perm' in rest or 'wave_' in rest or 'dst_sel' in rest:
                    self.src = self.src | R[0]
        else:
            raise ValueError('unknown op: ' + text)
    def is_dpp(self):
        return self.cls == 'valu' and re.search(r'row_|quad_perm|wave_|_dpp', self.text) is not None
    def states(self):
        if self.cls in ('label', 'none'): return 0
        if self.op == 's_nop':
            return int(self.text.split()[1], 0) + 1
        return 1

def mfma_passes(op):
    if '32x32x16' in op or '32x32x8' in op: return 8
    if '16x16x32' in op or '16x16x16' in op: return 4
    raise ValueError(op)

def fix_hazards(lines, verbose=False):
    ins = [Ins(l) for l in lines]
    out = []
    t = 0
    W = {}
    RC = {}
    ST = {}
    br = {}
    nnop = 0
    for i in ins:
        if i.cls == 'label':
            if i.label in br:
                skip = t - br[i.label]
                if skip > 0:
                    bt = br[i.label]
                    for d in (W, RC):
                        for k, v in list(d.items()):
                            if v[0] < bt: d[k] = (v[0] + skip,) + tuple(v[1:])
                    for k, v in list(ST.items()):
                        if v < bt: ST[k] = v + skip
            out.append(i.text); continue
        if i.cls == 'none':
            out.append(i.text); continue
        need = 0
        def req(prod_t, n):
            nonlocal need
            d = t - prod_t - 1
            if d < n: need = max(need, n - d)
        isv = i.cls == 'valu'
        for r in i.src:
            w = W.get(r)
            if not w: continue
            wt, kind, ex = w
            if r[0] in 'va':
                if kind == 'mfma':
                    p = ex[0]
                    if i.cls == 'mfma':
                        if r in i.srcab: req(wt, {4: 8, 8: 12}[p])
                        elif ex[1] == frozenset(i.srcc) and mfma_passes(i.op) == p: pass
                        else: req(wt, {4: 6, 8: 10}[p])
                    else:
                        req(wt, {4: 8, 8: 12}[p])
                elif kind in ('valu', 'trans', 'dot'):
                    if i.cls == 'mfma': req(wt, 2)
                    if kind == 'trans' and isv and i.op not in TRANS: req(wt, 1)
                    if kind == 'trans' and i.cls != 'valu': req(wt, 1)
                    if kind == 'dot':
                        if not (i.op == ex and r in i.dst): req(wt, 3)
                    if isv and (i.is_dpp() or i.op.startswith('v_permlane')): req(wt, 2)
                    if i.op in ('v_readlane_b32', 'v_readfirstlane_b32'): req(wt, 1)
                    if ex == 'opsel' and isv: req(wt, 1)
            else:
                if kind in ('valu', 'trans', 'dot'):
                    if i.cls == 'vmem': req(wt, 5)
                    elif isv:
                        if i.op in ('v_readlane_b32', 'v_writelane_b32'): req(wt, 4)
                        else: req(wt, 2)
                    elif i.cls in ('salu', 'branch', 'smem'): req(wt, 4 if i.cls != 'branch' else 5)
                if r == ('s', 'm0') and kind == 'salu' and i.cls in ('vmem', 'ds'): req(wt, 1)
        w = W.get(('s', 'exec'))
        if w and w[1] == 'valu':
            if i.cls == 'mfma' or i.op in ('v_readlane_b32', 'v_readfirstlane_b32', 'v_writelane_b32') or i.op.startswith('v_permlane'): req(w[0], 4)
            if i.is_dpp(): req(w[0], 5)
        for r in i.dst:
            w = W.get(r)
            if w and w[1] == 'mfma' and i.cls != 'mfma': req(w[0], {4: 8, 8: 12}[w[2][0]])
            if w and w[1] == 'mfma' and i.cls == 'mfma' and not (w[2][1] == frozenset(i.dst) and r in i.srcc):
                req(w[0], {4: 6, 8: 10}[w[2][0]])
            if w and w[1] == 'dot' and not (i.op == w[2]): req(w[0], 3)
            rc = RC.get(r)
            if rc and isv: req(rc[0], {4: 3, 8: 7}[rc[1]])
            s = ST.get(r)
            if s is not None: req(s, 2 if isv else 1)
        while need > 0:
            n = min(need, 16)
            out.append(f's_nop {n-1}'); t += n; need -= n; nnop += 1
        out.append(i.text)
        if i.cls == 'branch' and i.target not in br: br[i.target] = t + 1
        for r in i.dst:
            if i.cls == 'mfma': W[r] = (t, 'mfma', (mfma_passes(i.op), frozenset(i.dst)))
            elif isv:
                kind = 'trans' if i.op in TRANS else ('dot' if i.op.startswith('v_dot') else 'valu')
                ex = i.op if kind == 'dot' else ('opsel' if ('op_sel' in i.text and not i.op.startswith('v_pk')) or 'dst_sel' in i.text else None)
                W[r] = (t, kind, ex)
            else: W[r] = (t, i.cls, None)
        if i.cls == 'mfma':
            for r in i.srcc: RC[r] = (t, mfma_passes(i.op))
        if i.cls == 'vmem' and 'store' in i.op and ('x4' in i.op or 'x3' in i.op):
            first = split_ops(i.text.split(None, 1)[1])[0 if i.op.startswith('buffer') else 1]
            for r in regs_of(first): ST[r] = t
        t += i.states()
    if verbose: print('inserted nops:', nnop)
    return out

def check_waits(lines, name=''):
    vm = []; lg = []
    errs = []
    smem_pending = set()
    for n, l in enumerate(lines):
        i = Ins(l)
        if i.cls in ('label', 'none'): continue
        if i.op == 's_waitcnt':
            m = re.search(r'vmcnt\((\d+)\)', l)
            if m:
                k = int(m.group(1)); vm = vm[len(vm) - k:] if k < len(vm) else vm
                if k == 0: vm = []
            m = re.search(r'lgkmcnt\((\d+)\)', l)
            if m:
                k = int(m.group(1))
                if k == 0: lg = []; smem_pending = set()
                else:
                    if smem_pending: errs.append(f'{name}:{n}: counted lgkmcnt with smem pending: {l}')
                    lg = lg[len(lg) - k:] if k < len(lg) else lg
            continue
        if i.op == 's_endpgm' or i.op == 's_branch':
            vm = []; lg = []; smem_pending = set(); continue
        touched = i.src | i.dst
        for q, nm in ((vm, 'vm'), (lg, 'lgkm')):
            for d in q:
                bad = d & touched
                if bad: errs.append(f'{name}:{n}: {nm} pending reg {sorted(bad)[:3]} touched by: {l}')
        bad = smem_pending & touched
        if bad: errs.append(f'{name}:{n}: smem pending {sorted(bad, key=str)[:3]} touched by: {l}')
        if i.cls == 'vmem' and i.op not in ('buffer_inv', 'buffer_wbl2'):
            vm.append(set(i.dst))
            if len(vm) > 63: errs.append(f'{name}:{n}: more than 63 vmem outstanding')
        elif i.cls == 'ds':
            lg.append(set(i.dst))
        elif i.cls == 'smem':
            smem_pending |= i.dst
    return errs

class Kern:
    def __init__(self, name):
        self.name = name; self.L = []; self.vm = []
        self.uid = 0
    def __call__(self, s):
        for x in s.split('\n'):
            x = x.strip()
            if x: self.L.append(x)
    def emit(self, lst):
        for x in lst: self(x)
    def lab(self, base):
        self.uid += 1
        return f'{self.name}_{base}_{self.uid}'

def interleave(main, side, every=1, start=0):
    out = []; side = list(side)
    for n, g in enumerate(main):
        out += g if isinstance(g, list) else [g]
        if n >= start and (n - start) % every == every - 1 and side:
            s = side.pop(0); out += s if isinstance(s, list) else [s]
    for s in side: out += s if isinstance(s, list) else [s]
    return out

def descriptor(name, vgpr, sgpr=102, acc=None):
    acc = acc if acc is not None else (vgpr + 3) // 4 * 4
    return f""".section .rodata,"a"
.p2align 6
.amdhsa_kernel {name}
  .amdhsa_next_free_vgpr {vgpr}
  .amdhsa_next_free_sgpr {sgpr}
  .amdhsa_accum_offset {acc}
  .amdhsa_group_segment_fixed_size 0
  .amdhsa_kernarg_size 136
  .amdhsa_user_sgpr_count 2
  .amdhsa_user_sgpr_kernarg_segment_ptr 1
  .amdhsa_system_sgpr_workgroup_id_x 1
.end_amdhsa_kernel
"""
```

```python
import sys, importlib
from asmlib import *
HEAD = open('parallel_sum__ssm_conv_s4__mixer_gmlp__prompt.s.ref').read().split('; Override launch')[0] if __import__('os').path.exists('parallel_sum__ssm_conv_s4__mixer_gmlp__prompt.s.ref') else ''

def assemble(kernels):
    s = HEAD
    for k, c in kernels:
        s += f'; @launch kernel={k.name}_kernel grid=({c["grid"]},1,1) block=({c["block"]},1,1) lds={c["lds"]}\n'
    s += '.amdgcn_target "amdgcn-amd-amdhsa--gfx950"\n'
    bad = 0
    for k, c in kernels:
        lines = fix_hazards(k.L)
        errs = check_waits(lines, k.name)
        for e in errs[:20]: print('WAIT-ERR', e)
        bad += len(errs)
        lines = [l.split(';')[0].rstrip() for l in lines]
        n = f'{k.name}_kernel'
        s += f'.text\n.globl {n}\n.p2align 8\n.type {n},@function\n{n}:\n' + '\n'.join(lines) + '\n'
        s += descriptor(n, c['vgpr'], c.get('sgpr', 102), c.get('acc'))
        print(k.name, 'instructions:', len(lines), 'nops added:', len(lines) - len(k.L), 'lds', c['lds'])
    return s, bad

if __name__ == '__main__':
    import common
    names = [a for a in sys.argv[2:] if not a.startswith('-')]
    common.STAMP = '-s' in sys.argv
    ks = []
    for n in names:
        mod = importlib.import_module(n)
        ks.append(getattr(mod, 'gen_' + n)())
    s, bad = assemble(ks)
    if '-1' in sys.argv:
        N = 'parallel_sum__ssm_conv_s4__mixer_gmlp__prompt_kernel'
        s = s.replace('; @launch kernel=mega_kernel ', '; @launch ').replace('mega_kernel', N)
    open(sys.argv[1], 'w').write(s)
    print('wrote', sys.argv[1], len(s), 'bytes', 'WAIT ERRORS' if bad else '')
```

```python
from asmlib import *
from layout import *
OOB = 0x7ff00000
STAMP = False
WS_STAMP = 0x3000000

def srd(k, s, ptr_lo, size, off=0):
    if off:
        k(f's_add_u32 s{s}, s{ptr_lo}, {off}')
        k(f's_addc_u32 s{s+1}, s{ptr_lo+1}, 0')
        k(f's_and_b32 s{s+1}, s{s+1}, 0xffff')
    else:
        k(f's_mov_b32 s{s}, s{ptr_lo}')
        k(f's_and_b32 s{s+1}, s{ptr_lo+1}, 0xffff')
    k(f's_mov_b32 s{s+2}, {size}')
    k(f's_mov_b32 s{s+3}, 0x20000')

def tbfb(k, stb, sfb, t0, t1):
    k(f's_and_b32 s{t0}, s2, 7'); k(f's_lshr_b32 s{t1}, s2, 3')
    k(f's_and_b32 s{stb}, s{t0}, 1'); k(f's_lshl_b32 s{stb}, s{stb}, 3'); k(f's_and_b32 s{sfb}, s{t1}, 7'); k(f's_add_u32 s{stb}, s{stb}, s{sfb}')
    k(f's_lshr_b32 s{sfb}, s{t0}, 1'); k(f's_lshl_b32 s{sfb}, s{sfb}, 2'); k(f's_lshr_b32 s{t1}, s{t1}, 3'); k(f's_add_u32 s{sfb}, s{sfb}, s{t1}')

class VM:
    def __init__(self): self.q = []
    def add(self, tag, n=1): self.q += [tag] * n
    def wait(self, *tags):
        last = -1
        for i, t in enumerate(self.q):
            if t in tags: last = i
        n = len(self.q) - 1 - last
        self.q = self.q[last + 1:]
        assert n <= 63, n
        return n

def stamp_init(k, kidx, ws_lo):
    if not STAMP: return
    k(f's_add_u32 s96, s{ws_lo}, {WS_STAMP + kidx*0x40000}')
    k(f's_addc_u32 s97, s{ws_lo+1}, 0')
    k('s_lshl_b32 s98, s2, 10')
    k('s_add_u32 s96, s96, s98'); k('s_addc_u32 s97, s97, 0')
def stamp(k, idx, vt, wave_sgpr, vm=None):
    if not STAMP: return
    k('s_memrealtime s[98:99]')
    k('s_memtime s[100:101]')
    k('s_waitcnt lgkmcnt(0)')
    k(f'v_mov_b32 v{vt}, s98'); k(f'v_mov_b32 v{vt+1}, s100')
    k(f's_lshl_b32 s98, s{wave_sgpr}, 7')
    k(f'v_mov_b32 v{vt+2}, s98')
    k(f'global_store_dwordx2 v{vt+2}, v[{vt}:{vt+1}], s[96:97] offset:{idx*8}')
    if vm: vm.add('stamp')

GC0 = -2.0 * 0.7978845608028654 * 1.4426950408889634
GC1 = GC0 * 0.044715
import struct
def f2u(x): return struct.unpack('<I', struct.pack('<f', x))[0]
def gelu_stages(xs, ts, sC0, sC1):
    st = []
    st.append([f'v_mul_f32 v{t}, v{x}, v{x}' for x, t in zip(xs, ts)])
    st.append([f'v_fma_f32 v{t}, v{t}, s{sC1}, v{sC0}' for x, t in zip(xs, ts)])
    st.append([f'v_mul_f32 v{t}, v{t}, v{x}' for x, t in zip(xs, ts)])
    st.append([f'v_exp_f32 v{t}, v{t}' for t in ts])
    st.append([f'v_add_f32 v{t}, 1.0, v{t}' for t in ts])
    st.append([f'v_rcp_f32 v{t}, v{t}' for t in ts])
    st.append([f'v_mul_f32 v{x}, v{x}, v{t}' for x, t in zip(xs, ts)])
    return st

import os
SF = os.environ.get('SF', '')
```

```python
L = 2048; D = 576; F = 2304; NM = 128
OFF = dict(x=0, A_re=8, A_im=16, B_re=24, B_im=32, C_re=40, C_im=48, log_dt=56, Dskip=64, B_x=72,
           w_in=80, w_sp=88, b_sp=96, w_out=104, out=112, dbg=120, ws=128)
WS_Z1 = 0x0000000;  SZ_Z = 2048 * 2304 * 2
WS_Z2N = 0x0900000
WS_H = 0x1200000
WS_XNT = 0x1B00000; SZ_T = 576 * 2048 * 2
WS_YT = 0x1D80000
WS_WOP = 0x2000000; SZ_WOP = 2304 * 576 * 2
WS_KR = 0x2300000;  KR_STRIDE = 8320; KR_COPY = 4160; SZ_KR = 576 * KR_STRIDE
WS_ST = 0x2800000;  SZ_ST = 16 * 16 * 1024
WS_END = 0x2900000

def trow(mt, m):
    return 8 * (m >> 2) + 4 * mt + (m & 3)

def kstep3_groups(q):
    P, j = divmod(q, 9)
    if j < 4: fa = 288 * P + 32 * j; return fa, fa + 16
    if j < 8: fa = 288 * P + 144 + 32 * (j - 4); return fa, fa + 16
    return 288 * P + 128, 288 * P + 272
```

```python
from asmlib import *
from layout import *
OOB = 0x7ff00000
STAMP = False
WS_STAMP = 0x3000000

def srd(k, s, ptr_lo, size, off=0):
    if off:
        k(f's_add_u32 s{s}, s{ptr_lo}, {off}')
        k(f's_addc_u32 s{s+1}, s{ptr_lo+1}, 0')
        k(f's_and_b32 s{s+1}, s{s+1}, 0xffff')
    else:
        k(f's_mov_b32 s{s}, s{ptr_lo}')
        k(f's_and_b32 s{s+1}, s{ptr_lo+1}, 0xffff')
    k(f's_mov_b32 s{s+2}, {size}')
    k(f's_mov_b32 s{s+3}, 0x20000')

def tbfb(k, stb, sfb, t0, t1):
    k(f's_and_b32 s{t0}, s2, 7'); k(f's_lshr_b32 s{t1}, s2, 3')
    k(f's_and_b32 s{stb}, s{t0}, 1'); k(f's_lshl_b32 s{stb}, s{stb}, 3'); k(f's_and_b32 s{sfb}, s{t1}, 7'); k(f's_add_u32 s{stb}, s{stb}, s{sfb}')
    k(f's_lshr_b32 s{sfb}, s{t0}, 1'); k(f's_lshl_b32 s{sfb}, s{sfb}, 2'); k(f's_lshr_b32 s{t1}, s{t1}, 3'); k(f's_add_u32 s{sfb}, s{sfb}, s{t1}')

class VM:
    def __init__(self): self.q = []
    def add(self, tag, n=1): self.q += [tag] * n
    def wait(self, *tags):
        last = -1
        for i, t in enumerate(self.q):
            if t in tags: last = i
        n = len(self.q) - 1 - last
        self.q = self.q[last + 1:]
        assert n <= 63, n
        return n

def stamp_init(k, kidx, ws_lo):
    if not STAMP: return
    k(f's_add_u32 s96, s{ws_lo}, {WS_STAMP + kidx*0x80000}')
    k(f's_addc_u32 s97, s{ws_lo+1}, 0')
    k('s_lshl_b32 s98, s2, 11')
    k('s_add_u32 s96, s96, s98'); k('s_addc_u32 s97, s97, 0')
def stamp(k, idx, vt, wave_sgpr, vm=None):
    if not STAMP: return
    k('s_memrealtime s[98:99]')
    k('s_memtime s[100:101]')
    k('s_waitcnt lgkmcnt(0)')
    k(f'v_mov_b32 v{vt}, s98'); k(f'v_mov_b32 v{vt+1}, s100')
    k(f's_lshl_b32 s98, s{wave_sgpr}, 8')
    k(f'v_mov_b32 v{vt+2}, s98')
    k(f'global_store_dwordx2 v{vt+2}, v[{vt}:{vt+1}], s[96:97] offset:{idx*8}')
    if vm: vm.add('stamp')

GC0 = -2.0 * 0.7978845608028654 * 1.4426950408889634
GC1 = GC0 * 0.044715
import struct
def f2u(x): return struct.unpack('<I', struct.pack('<f', x))[0]
def gelu_stages(xs, ts, sC0, sC1):
    st = []
    st.append([f'v_mul_f32 v{t}, v{x}, v{x}' for x, t in zip(xs, ts)])
    st.append([f'v_fma_f32 v{t}, v{t}, s{sC1}, v{sC0}' for x, t in zip(xs, ts)])
    st.append([f'v_mul_f32 v{t}, v{t}, v{x}' for x, t in zip(xs, ts)])
    st.append([f'v_exp_f32 v{t}, v{t}' for t in ts])
    st.append([f'v_add_f32 v{t}, 1.0, v{t}' for t in ts])
    st.append([f'v_rcp_f32 v{t}, v{t}' for t in ts])
    st.append([f'v_mul_f32 v{x}, v{x}, v{t}' for x, t in zip(xs, ts)])
    return st

import os
SF = os.environ.get('SF', '')

NAMES = {}
def stp(k, name, vt, vm=None):
    if not STAMP: return
    if name not in NAMES: NAMES[name] = len(NAMES)
    assert NAMES[name] < 32
    stamp(k, NAMES[name], vt, 29, vm)
    import json
    json.dump(NAMES, open('stamps.json', 'w'))
```

```python
import re

REG_RE = re.compile(r'(?<![\w.])(-?)(?:abs\()?([vas])(\d+|\[(\d+):(\d+)\])')
TRANS = ('v_exp_f32', 'v_log_f32', 'v_rcp_f32', 'v_rsq_f32', 'v_sqrt_f32', 'v_sin_f32', 'v_cos_f32', 'v_rcp_iflag_f32')

def regs_of(tok):
    out = set()
    tok = tok.strip()
    for m in REG_RE.finditer(tok):
        kind = m.group(2)
        if m.group(4) is not None:
            for r in range(int(m.group(4)), int(m.group(5)) + 1):
                out.add((kind, r))
        else:
            out.add((kind, int(m.group(3))))
    if re.search(r'\bvcc\b', tok): out |= {('s', 'vcc')}
    if re.search(r'\bexec\b', tok): out |= {('s', 'exec')}
    if re.search(r'\bm0\b', tok): out |= {('s', 'm0')}
    return out

def split_ops(rest):
    ops = []; depth = 0; cur = ''
    for ch in rest:
        if ch == '[' or ch == '(': depth += 1
        if ch == ']' or ch == ')': depth -= 1
        if ch == ',' and depth == 0:
            ops.append(cur.strip()); cur = ''
        else:
            cur += ch
    if cur.strip(): ops.append(cur.strip())
    return ops

class Ins:
    __slots__ = ('text', 'op', 'dst', 'src', 'cls', 'label', 'target', 'srcc', 'srcab', 'note')
    def __init__(self, text):
        self.text = text; self.label = None; self.target = None
        self.dst = set(); self.src = set(); self.srcc = set(); self.srcab = set()
        t = text.split(';')[0].strip()
        if t.endswith(':'):
            self.label = t[:-1]; self.op = ''; self.cls = 'label'; return
        if not t or t.startswith('.'):
            self.op = ''; self.cls = 'none'; return
        parts = t.split(None, 1)
        op = parts[0]; rest = parts[1] if len(parts) > 1 else ''
        self.op = op
        ops = split_ops(rest)
        R = [regs_of(o) for o in ops]
        allr = set().union(*R) if R else set()
        if op.startswith('v_mfma'):
            self.cls = 'mfma'; self.dst = R[0]; self.srcab = R[1] | R[2]; self.srcc = R[3]; self.src = R[1] | R[2] | R[3]
        elif op.startswith('ds_'):
            self.cls = 'ds'
            if op.startswith('ds_read') or op.startswith('ds_bpermute') or op.startswith('ds_swizzle') or '_rtn' in op:
                self.dst = R[0]; self.src = set().union(*R[1:])
            else:
                self.src = allr
        elif op.startswith('buffer_') or op.startswith('global_'):
            self.cls = 'vmem'
            islds = re.search(r'\blds\b', rest) is not None
            if 'load' in op and not islds:
                self.dst = R[0]; self.src = set().union(*R[1:])
            elif 'atomic' in op and re.search(r'\bsc0\b', rest):
                self.dst = R[0]; self.src = allr
            else:
                self.src = allr
                if islds: self.src = self.src | {('s', 'm0')}
            if op in ('buffer_inv', 'buffer_wbl2'): self.src = set()
        elif op.startswith('s_load') or op.startswith('s_buffer_load') or op in ('s_memtime', 's_memrealtime'):
            self.cls = 'smem'; self.dst = R[0]; self.src = set().union(*R[1:]) if len(R) > 1 else set()
        elif op.startswith('s_'):
            self.cls = 'salu'
            if op.startswith('s_cbranch') or op == 's_branch':
                self.cls = 'branch'; self.target = ops[0]
                if 'vcc' in op: self.src = {('s', 'vcc')}
                if 'exec' in op: self.src = {('s', 'exec')}
            elif op.startswith('s_cmp') or op in ('s_waitcnt', 's_barrier', 's_nop', 's_setprio', 's_endpgm', 's_sleep', 's_bitcmp0_b32', 's_bitcmp1_b32'):
                self.src = allr
            else:
                self.dst = R[0]; self.src = set().union(*R[1:]) if len(R) > 1 else set()
                if 'saveexec' in op: self.dst = self.dst | {('s', 'exec')}; self.src = self.src | {('s', 'exec')}
                if op in ('s_addk_i32', 's_mulk_i32'): self.src = self.src | R[0]
        elif op.startswith('v_'):
            self.cls = 'valu'
            base = re.sub(r'_(e32|e64|dpp|sdwa)$', '', op)
            self.op = base
            if base.startswith('v_permlane') and 'swap' in base:
                self.dst = R[0] | R[1]; self.src = R[0] | R[1]
            elif base.startswith('v_cmpx'):
                self.dst = R[0] | {('s', 'exec')}; self.src = set().union(*R[1:])
            elif base in ('v_add_co_u32', 'v_sub_co_u32', 'v_addc_co_u32', 'v_subb_co_u32', 'v_div_scale_f32', 'v_mad_u64_u32'):
                self.dst = R[0] | R[1]; self.src = set().union(*R[2:])
            else:
                self.dst = R[0]; self.src = set().union(*R[1:]) if len(R) > 1 else set()
                if base in ('v_fmac_f32', 'v_dot2c_f32_bf16', 'v_pk_fmac_f16', 'v_writelane_b32') or 'row_' in rest or 'quad_perm' in rest or 'wave_' in rest or 'dst_sel' in rest:
                    self.src = self.src | R[0]
        else:
            raise ValueError('unknown op: ' + text)
    def is_dpp(self):
        return self.cls == 'valu' and re.search(r'row_|quad_perm|wave_|_dpp', self.text) is not None
    def states(self):
        if self.cls in ('label', 'none'): return 0
        if self.op == 's_nop':
            return int(self.text.split()[1], 0) + 1
        return 1

def mfma_passes(op):
    if '32x32x16' in op or '32x32x8' in op: return 8
    if '16x16x32' in op or '16x16x16' in op: return 4
    raise ValueError(op)

def fix_hazards(lines, verbose=False):
    ins = [Ins(l) for l in lines]
    out = []
    t = 0
    W = {}
    RC = {}
    ST = {}
    br = {}
    nnop = 0
    for i in ins:
        if i.cls == 'label':
            if i.label in br:
                skip = t - br[i.label]
                if skip > 0:
                    bt = br[i.label]
                    for d in (W, RC):
                        for k, v in list(d.items()):
                            if v[0] < bt: d[k] = (v[0] + skip,) + tuple(v[1:])
                    for k, v in list(ST.items()):
                        if v < bt: ST[k] = v + skip
            out.append(i.text); continue
        if i.cls == 'none':
            out.append(i.text); continue
        need = 0
        def req(prod_t, n):
            nonlocal need
            d = t - prod_t - 1
            if d < n: need = max(need, n - d)
        isv = i.cls == 'valu'
        for r in i.src:
            w = W.get(r)
            if not w: continue
            wt, kind, ex = w
            if r[0] in 'va':
                if kind == 'mfma':
                    p = ex[0]
                    if i.cls == 'mfma':
                        if r in i.srcab: req(wt, {4: 8, 8: 12}[p])
                        elif ex[1] == frozenset(i.srcc) and mfma_passes(i.op) == p: pass
                        else: req(wt, {4: 6, 8: 10}[p])
                    else:
                        req(wt, {4: 8, 8: 12}[p])
                elif kind in ('valu', 'trans', 'dot'):
                    if i.cls == 'mfma': req(wt, 2)
                    if kind == 'trans' and isv and i.op not in TRANS: req(wt, 1)
                    if kind == 'trans' and i.cls != 'valu': req(wt, 1)
                    if kind == 'dot':
                        if not (i.op == ex and r in i.dst): req(wt, 3)
                    if isv and (i.is_dpp() or i.op.startswith('v_permlane')): req(wt, 2)
                    if i.op in ('v_readlane_b32', 'v_readfirstlane_b32'): req(wt, 1)
                    if ex == 'opsel' and isv: req(wt, 1)
            else:
                if kind in ('valu', 'trans', 'dot'):
                    if i.cls == 'vmem': req(wt, 5)
                    elif isv:
                        if i.op in ('v_readlane_b32', 'v_writelane_b32'): req(wt, 4)
                        else: req(wt, 2)
                    elif i.cls in ('salu', 'branch', 'smem'): req(wt, 4 if i.cls != 'branch' else 5)
                if r == ('s', 'm0') and kind == 'salu' and i.cls in ('vmem', 'ds'): req(wt, 1)
        w = W.get(('s', 'exec'))
        if w and w[1] == 'valu':
            if i.cls == 'mfma' or i.op in ('v_readlane_b32', 'v_readfirstlane_b32', 'v_writelane_b32') or i.op.startswith('v_permlane'): req(w[0], 4)
            if i.is_dpp(): req(w[0], 5)
        for r in i.dst:
            w = W.get(r)
            if w and w[1] == 'mfma' and i.cls != 'mfma': req(w[0], {4: 8, 8: 12}[w[2][0]])
            if w and w[1] == 'mfma' and i.cls == 'mfma' and not (w[2][1] == frozenset(i.dst) and r in i.srcc):
                req(w[0], {4: 6, 8: 10}[w[2][0]])
            if w and w[1] == 'dot' and not (i.op == w[2]): req(w[0], 3)
            rc = RC.get(r)
            if rc and isv: req(rc[0], {4: 3, 8: 7}[rc[1]])
            s = ST.get(r)
            if s is not None: req(s, 2 if isv else 1)
        while need > 0:
            n = min(need, 16)
            out.append(f's_nop {n-1}'); t += n; need -= n; nnop += 1
        out.append(i.text)
        if i.cls == 'branch' and i.target not in br: br[i.target] = t + 1
        for r in i.dst:
            if i.cls == 'mfma': W[r] = (t, 'mfma', (mfma_passes(i.op), frozenset(i.dst)))
            elif isv:
                kind = 'trans' if i.op in TRANS else ('dot' if i.op.startswith('v_dot') else 'valu')
                ex = i.op if kind == 'dot' else ('opsel' if ('op_sel' in i.text and not i.op.startswith('v_pk')) or 'dst_sel' in i.text else None)
                W[r] = (t, kind, ex)
            else: W[r] = (t, i.cls, None)
        if i.cls == 'mfma':
            for r in i.srcc: RC[r] = (t, mfma_passes(i.op))
        if i.cls == 'vmem' and 'store' in i.op and ('x4' in i.op or 'x3' in i.op):
            first = split_ops(i.text.split(None, 1)[1])[0 if i.op.startswith('buffer') else 1]
            for r in regs_of(first): ST[r] = t
        t += i.states()
    if verbose: print('inserted nops:', nnop)
    return out

def check_waits(lines, name=''):
    vm = []; lg = []; vt = []; seen = set()
    errs = []
    smem_pending = set()
    skip = False
    for n, l in enumerate(lines):
        i = Ins(l)
        if i.cls in ('label', 'none'): continue
        if i.op == 's_sleep': skip = True
        if skip:
            if i.op == 's_branch': skip = False
            continue
        if i.op == 's_waitcnt':
            m = re.search(r'vmcnt\((\d+)\)', l)
            if m:
                k = int(m.group(1)); vm = vm[len(vm) - k:] if k < len(vm) else vm
                vt = vt[len(vt) - k:] if k < len(vt) else vt
                if k == 0: vm = []; vt = []
                mm = re.search(r'; N:(\S+)', l)
                if mm:
                    for tg in mm.group(1).split(','):
                        if tg in vt: errs.append(f'{name}:{n}: tag {tg} still in flight after: {l}')
                        if tg not in seen: errs.append(f'{name}:{n}: tag {tg} never issued before: {l}')
            m = re.search(r'lgkmcnt\((\d+)\)', l)
            if m:
                k = int(m.group(1))
                if k == 0: lg = []; smem_pending = set()
                else:
                    if smem_pending: errs.append(f'{name}:{n}: counted lgkmcnt with smem pending: {l}')
                    lg = lg[len(lg) - k:] if k < len(lg) else lg
            continue
        if i.op == 's_endpgm' or i.op == 's_branch':
            if 'KEEP' not in l: vm = []; lg = []; vt = []; smem_pending = set()
            continue
        touched = i.src | i.dst
        for q, nm in ((vm, 'vm'), (lg, 'lgkm')):
            for d in q:
                bad = d & touched
                if bad: errs.append(f'{name}:{n}: {nm} pending reg {sorted(bad)[:3]} touched by: {l}')
        bad = smem_pending & touched
        if bad: errs.append(f'{name}:{n}: smem pending {sorted(bad, key=str)[:3]} touched by: {l}')
        if i.cls == 'vmem' and i.op not in ('buffer_inv', 'buffer_wbl2'):
            vm.append(set(i.dst))
            mm = re.search(r'; T:(\S+)', l); vt.append(mm.group(1) if mm else None)
            if mm: seen.add(mm.group(1))
            if len(vm) > 63: errs.append(f'{name}:{n}: more than 63 vmem outstanding')
        elif i.cls == 'ds':
            lg.append(set(i.dst))
        elif i.cls == 'smem':
            smem_pending |= i.dst
    return errs

class Kern:
    def __init__(self, name):
        self.name = name; self.L = []; self.vm = []
        self.uid = 0
    def __call__(self, s):
        for x in s.split('\n'):
            x = x.strip()
            if x: self.L.append(x)
    def emit(self, lst):
        for x in lst: self(x)
    def lab(self, base):
        self.uid += 1
        return f'{self.name}_{base}_{self.uid}'

def interleave(main, side, every=1, start=0):
    out = []; side = list(side)
    for n, g in enumerate(main):
        out += g if isinstance(g, list) else [g]
        if n >= start and (n - start) % every == every - 1 and side:
            s = side.pop(0); out += s if isinstance(s, list) else [s]
    for s in side: out += s if isinstance(s, list) else [s]
    return out

def descriptor(name, vgpr, sgpr=102, acc=None):
    acc = acc if acc is not None else (vgpr + 3) // 4 * 4
    return f""".section .rodata,"a"
.p2align 6
.amdhsa_kernel {name}
  .amdhsa_next_free_vgpr {vgpr}
  .amdhsa_next_free_sgpr {sgpr}
  .amdhsa_accum_offset {acc}
  .amdhsa_group_segment_fixed_size 0
  .amdhsa_kernarg_size 136
  .amdhsa_user_sgpr_count 2
  .amdhsa_user_sgpr_kernarg_segment_ptr 1
  .amdhsa_system_sgpr_workgroup_id_x 1
.end_amdhsa_kernel
"""
```

```python
import os
from asmlib import *
from layout import *
OOB = 0x7ff00000
STAMP = False
WS_STAMP = 0x3000000

def srd(k, s, ptr_lo, size, off=0):
    if off:
        k(f's_add_u32 s{s}, s{ptr_lo}, {off}')
        k(f's_addc_u32 s{s+1}, s{ptr_lo+1}, 0')
        k(f's_and_b32 s{s+1}, s{s+1}, 0xffff')
    else:
        k(f's_mov_b32 s{s}, s{ptr_lo}')
        k(f's_and_b32 s{s+1}, s{ptr_lo+1}, 0xffff')
    k(f's_mov_b32 s{s+2}, {size}')
    k(f's_mov_b32 s{s+3}, 0x20000')

def tbfb(k, stb, sfb, t0, t1):
    k(f's_and_b32 s{t0}, s2, 7'); k(f's_lshr_b32 s{t1}, s2, 3')
    k(f's_and_b32 s{stb}, s{t0}, 1'); k(f's_lshl_b32 s{stb}, s{stb}, 3'); k(f's_and_b32 s{sfb}, s{t1}, 7'); k(f's_add_u32 s{stb}, s{stb}, s{sfb}')
    k(f's_lshr_b32 s{sfb}, s{t0}, 1'); k(f's_lshl_b32 s{sfb}, s{sfb}, 2'); k(f's_lshr_b32 s{t1}, s{t1}, 3'); k(f's_add_u32 s{sfb}, s{sfb}, s{t1}')

class VM:
    def __init__(self): self.q = []
    def add(self, tag, n=1): self.q += [tag] * n
    def wait(self, *tags):
        last = -1
        for i, t in enumerate(self.q):
            if t in tags: last = i
        n = len(self.q) - 1 - last
        self.q = self.q[last + 1:]
        assert n <= 63, n
        return n

def stamp_init(k, kidx, ws_lo):
    if not STAMP: return
    k(f's_add_u32 s96, s{ws_lo}, {WS_STAMP + kidx*0x80000}')
    k(f's_addc_u32 s97, s{ws_lo+1}, 0')
    k('s_lshl_b32 s98, s2, 11')
    k('s_add_u32 s96, s96, s98'); k('s_addc_u32 s97, s97, 0')
def stamp(k, idx, vt, wave_sgpr, vm=None):
    if not STAMP: return
    k('s_memrealtime s[98:99]')
    k('s_memtime s[100:101]')
    k('s_waitcnt lgkmcnt(0)')
    k(f'v_mov_b32 v{vt}, s98'); k(f'v_mov_b32 v{vt+1}, s100')
    k(f's_lshl_b32 s98, s{wave_sgpr}, 8')
    k(f'v_mov_b32 v{vt+2}, s98')
    k(f'global_store_dwordx2 v{vt+2}, v[{vt}:{vt+1}], s[96:97] offset:{idx*8}')
    if vm: vm.add('stamp')

GC0 = -2.0 * 0.7978845608028654 * 1.4426950408889634
GC1 = GC0 * 0.044715
import struct
def f2u(x): return struct.unpack('<I', struct.pack('<f', x))[0]
def gelu_stages(xs, ts, sC0, sC1):
    st = []
    st.append([f'v_mul_f32 v{t}, v{x}, v{x}' for x, t in zip(xs, ts)])
    st.append([f'v_fma_f32 v{t}, v{t}, s{sC1}, v{sC0}' for x, t in zip(xs, ts)])
    st.append([f'v_mul_f32 v{t}, v{t}, v{x}' for x, t in zip(xs, ts)])
    st.append([f'v_exp_f32 v{t}, v{t}' for t in ts])
    st.append([f'v_add_f32 v{t}, 1.0, v{t}' for t in ts])
    st.append([f'v_rcp_f32 v{t}, v{t}' for t in ts])
    st.append([f'v_mul_f32 v{x}, v{x}, v{t}' for x, t in zip(xs, ts)])
    return st

SF = os.environ.get('SF', '')

NAMES = {}
DBGST = os.environ.get('DBGST')
DN = ['loop1', 'q6', 'q12', 'loop1end', 'E3bar', 'S2ok', 'z2nst', 'E4bar', 'E4dbar', 'loop2', 'loop2end', 'hst', 'hack', 'S4ok', 'g3end', 'end', 'gelu', 'g3q4', 'g2s9', 'g2s55']
def stp(k, name, vt, vm=None):
    if DBGST is not None:
        if name == 'start':
            k('s_memrealtime s[96:97]'); k('s_waitcnt lgkmcnt(0)'); return
        if name not in DN: return
        i = DN.index(name); w = [1, 2, 3, 5, 6, 7, 9, 10, 11, 13, 14, 15][i // 2]
        lb = k.lab('ds')
        k('s_lshl_b32 s98, s2, 3'); k('s_add_u32 s98, s98, s29'); k(f's_cmp_eq_u32 s98, {int(DBGST) * 8}'); k(f's_cbranch_scc0 {lb}')
        k('s_load_dwordx2 s[100:101], s[0:1], 120')
        k('s_memrealtime s[98:99]'); k('s_waitcnt lgkmcnt(0)'); k('s_sub_u32 s98, s98, s96')
        k(f'v_mov_b32 v{vt}, s98'); k(f'v_mov_b32 v{vt+2}, 0')
        k(f'global_store_short v{vt+2}, v{vt}, s[100:101] offset:{w * 4 + (i % 2) * 2}')
        k(f'{lb}:')
        return
    if not STAMP: return
    if 'fine' in os.environ.get('EXP', '') and name not in ('start', 'E3bar', 'p2end', 'end'): return
    if name not in NAMES: NAMES[name] = len(NAMES)
    assert NAMES[name] < 32
    stamp(k, NAMES[name], vt, 29, vm)
    import json
    json.dump(NAMES, open('stamps.json', 'w'))
```

```python
import re

REG_RE = re.compile(r'(?<![\w.])(-?)(?:abs\()?([vas])(\d+|\[(\d+):(\d+)\])')
TRANS = ('v_exp_f32', 'v_log_f32', 'v_rcp_f32', 'v_rsq_f32', 'v_sqrt_f32', 'v_sin_f32', 'v_cos_f32', 'v_rcp_iflag_f32')

def regs_of(tok):
    out = set()
    tok = tok.strip()
    for m in REG_RE.finditer(tok):
        kind = m.group(2)
        if m.group(4) is not None:
            for r in range(int(m.group(4)), int(m.group(5)) + 1):
                out.add((kind, r))
        else:
            out.add((kind, int(m.group(3))))
    if re.search(r'\bvcc\b', tok): out |= {('s', 'vcc')}
    if re.search(r'\bexec\b', tok): out |= {('s', 'exec')}
    if re.search(r'\bm0\b', tok): out |= {('s', 'm0')}
    return out

def split_ops(rest):
    ops = []; depth = 0; cur = ''
    for ch in rest:
        if ch == '[' or ch == '(': depth += 1
        if ch == ']' or ch == ')': depth -= 1
        if ch == ',' and depth == 0:
            ops.append(cur.strip()); cur = ''
        else:
            cur += ch
    if cur.strip(): ops.append(cur.strip())
    return ops

class Ins:
    __slots__ = ('text', 'op', 'dst', 'src', 'cls', 'label', 'target', 'srcc', 'srcab', 'note')
    def __init__(self, text):
        self.text = text; self.label = None; self.target = None
        self.dst = set(); self.src = set(); self.srcc = set(); self.srcab = set()
        t = text.split(';')[0].strip()
        if t.endswith(':'):
            self.label = t[:-1]; self.op = ''; self.cls = 'label'; return
        if not t or t.startswith('.'):
            self.op = ''; self.cls = 'none'; return
        parts = t.split(None, 1)
        op = parts[0]; rest = parts[1] if len(parts) > 1 else ''
        self.op = op
        ops = split_ops(rest)
        R = [regs_of(o) for o in ops]
        allr = set().union(*R) if R else set()
        if op.startswith('v_mfma'):
            self.cls = 'mfma'; self.dst = R[0]; self.srcab = R[1] | R[2]; self.srcc = R[3]; self.src = R[1] | R[2] | R[3]
        elif op.startswith('ds_'):
            self.cls = 'ds'
            if op.startswith('ds_read') or op.startswith('ds_bpermute') or op.startswith('ds_swizzle') or '_rtn' in op:
                self.dst = R[0]; self.src = set().union(*R[1:])
            else:
                self.src = allr
        elif op.startswith('buffer_') or op.startswith('global_'):
            self.cls = 'vmem'
            islds = re.search(r'\blds\b', rest) is not None
            if 'load' in op and not islds:
                self.dst = R[0]; self.src = set().union(*R[1:])
            elif 'atomic' in op and re.search(r'\bsc0\b', rest):
                self.dst = R[0]; self.src = allr
            else:
                self.src = allr
                if islds: self.src = self.src | {('s', 'm0')}
            if op in ('buffer_inv', 'buffer_wbl2'): self.src = set()
        elif op.startswith('s_load') or op.startswith('s_buffer_load') or op in ('s_memtime', 's_memrealtime'):
            self.cls = 'smem'; self.dst = R[0]; self.src = set().union(*R[1:]) if len(R) > 1 else set()
        elif op.startswith('s_'):
            self.cls = 'salu'
            if op.startswith('s_cbranch') or op == 's_branch':
                self.cls = 'branch'; self.target = ops[0]
                if 'vcc' in op: self.src = {('s', 'vcc')}
                if 'exec' in op: self.src = {('s', 'exec')}
            elif op.startswith('s_cmp') or op in ('s_waitcnt', 's_barrier', 's_nop', 's_setprio', 's_endpgm', 's_sleep', 's_bitcmp0_b32', 's_bitcmp1_b32'):
                self.src = allr
            else:
                self.dst = R[0]; self.src = set().union(*R[1:]) if len(R) > 1 else set()
                if 'saveexec' in op: self.dst = self.dst | {('s', 'exec')}; self.src = self.src | {('s', 'exec')}
                if op in ('s_addk_i32', 's_mulk_i32'): self.src = self.src | R[0]
        elif op.startswith('v_'):
            self.cls = 'valu'
            base = re.sub(r'_(e32|e64|dpp|sdwa)$', '', op)
            self.op = base
            if base.startswith('v_permlane') and 'swap' in base:
                self.dst = R[0] | R[1]; self.src = R[0] | R[1]
            elif base.startswith('v_cmpx'):
                self.dst = R[0] | {('s', 'exec')}; self.src = set().union(*R[1:])
            elif base in ('v_add_co_u32', 'v_sub_co_u32', 'v_addc_co_u32', 'v_subb_co_u32', 'v_div_scale_f32', 'v_mad_u64_u32'):
                self.dst = R[0] | R[1]; self.src = set().union(*R[2:])
            else:
                self.dst = R[0]; self.src = set().union(*R[1:]) if len(R) > 1 else set()
                if base in ('v_fmac_f32', 'v_dot2c_f32_bf16', 'v_pk_fmac_f16', 'v_writelane_b32') or 'row_' in rest or 'quad_perm' in rest or 'wave_' in rest or 'dst_sel' in rest:
                    self.src = self.src | R[0]
        else:
            raise ValueError('unknown op: ' + text)
    def is_dpp(self):
        return self.cls == 'valu' and re.search(r'row_|quad_perm|wave_|_dpp', self.text) is not None
    def states(self):
        if self.cls in ('label', 'none'): return 0
        if self.op == 's_nop':
            return int(self.text.split()[1], 0) + 1
        return 1

def mfma_passes(op):
    if '32x32x16' in op or '32x32x8' in op: return 8
    if '16x16x32' in op or '16x16x16' in op: return 4
    raise ValueError(op)

def fix_hazards(lines, verbose=False):
    ins = [Ins(l) for l in lines]
    out = []
    t = 0
    W = {}
    RC = {}
    ST = {}
    br = {}
    nnop = 0
    for i in ins:
        if i.cls == 'label':
            if i.label in br:
                skip = t - br[i.label]
                if skip > 0:
                    bt = br[i.label]
                    for d in (W, RC):
                        for k, v in list(d.items()):
                            if v[0] < bt: d[k] = (v[0] + skip,) + tuple(v[1:])
                    for k, v in list(ST.items()):
                        if v < bt: ST[k] = v + skip
            out.append(i.text); continue
        if i.cls == 'none':
            out.append(i.text); continue
        need = 0
        def req(prod_t, n):
            nonlocal need
            d = t - prod_t - 1
            if d < n: need = max(need, n - d)
        isv = i.cls == 'valu'
        for r in i.src:
            w = W.get(r)
            if not w: continue
            wt, kind, ex = w
            if r[0] in 'va':
                if kind == 'mfma':
                    p = ex[0]
                    if i.cls == 'mfma':
                        if r in i.srcab: req(wt, {4: 8, 8: 12}[p])
                        elif ex[1] == frozenset(i.srcc) and mfma_passes(i.op) == p: pass
                        else: req(wt, {4: 6, 8: 10}[p])
                    else:
                        req(wt, {4: 8, 8: 12}[p])
                elif kind in ('valu', 'trans', 'dot'):
                    if i.cls == 'mfma': req(wt, 2)
                    if kind == 'trans' and isv and i.op not in TRANS: req(wt, 1)
                    if kind == 'trans' and i.cls != 'valu': req(wt, 1)
                    if kind == 'dot':
                        if not (i.op == ex and r in i.dst): req(wt, 3)
                    if isv and (i.is_dpp() or i.op.startswith('v_permlane')): req(wt, 2)
                    if i.op in ('v_readlane_b32', 'v_readfirstlane_b32'): req(wt, 1)
                    if ex == 'opsel' and isv: req(wt, 1)
            else:
                if kind in ('valu', 'trans', 'dot'):
                    if i.cls == 'vmem': req(wt, 5)
                    elif isv:
                        if i.op in ('v_readlane_b32', 'v_writelane_b32'): req(wt, 4)
                        else: req(wt, 2)
                    elif i.cls in ('salu', 'branch', 'smem'): req(wt, 4 if i.cls != 'branch' else 5)
                if r == ('s', 'm0') and kind == 'salu' and i.cls in ('vmem', 'ds'): req(wt, 1)
        w = W.get(('s', 'exec'))
        if w and w[1] == 'valu':
            if i.cls == 'mfma' or i.op in ('v_readlane_b32', 'v_readfirstlane_b32', 'v_writelane_b32') or i.op.startswith('v_permlane'): req(w[0], 4)
            if i.is_dpp(): req(w[0], 5)
        for r in i.dst:
            w = W.get(r)
            if w and w[1] == 'mfma' and i.cls != 'mfma': req(w[0], {4: 8, 8: 12}[w[2][0]])
            if w and w[1] == 'mfma' and i.cls == 'mfma' and not (w[2][1] == frozenset(i.dst) and r in i.srcc):
                req(w[0], {4: 6, 8: 10}[w[2][0]])
            if w and w[1] == 'dot' and not (i.op == w[2]): req(w[0], 3)
            rc = RC.get(r)
            if rc and isv: req(rc[0], {4: 3, 8: 7}[rc[1]])
            s = ST.get(r)
            if s is not None: req(s, 2 if isv else 1)
        while need > 0:
            n = min(need, 16)
            out.append(f's_nop {n-1}'); t += n; need -= n; nnop += 1
        out.append(i.text)
        if i.cls == 'branch' and i.target not in br: br[i.target] = t + 1
        for r in i.dst:
            if i.cls == 'mfma': W[r] = (t, 'mfma', (mfma_passes(i.op), frozenset(i.dst)))
            elif isv:
                kind = 'trans' if i.op in TRANS else ('dot' if i.op.startswith('v_dot') else 'valu')
                ex = i.op if kind == 'dot' else ('opsel' if ('op_sel' in i.text and not i.op.startswith('v_pk')) or 'dst_sel' in i.text else None)
                W[r] = (t, kind, ex)
            else: W[r] = (t, i.cls, None)
        if i.cls == 'mfma':
            for r in i.srcc: RC[r] = (t, mfma_passes(i.op))
        if i.cls == 'vmem' and 'store' in i.op and ('x4' in i.op or 'x3' in i.op):
            first = split_ops(i.text.split(None, 1)[1])[0 if i.op.startswith('buffer') else 1]
            for r in regs_of(first): ST[r] = t
        t += i.states()
    if verbose: print('inserted nops:', nnop)
    return out

def check_waits(lines, name=''):
    vm = []; lg = []; vt = []; seen = set()
    errs = []
    smem_pending = set()
    skip = False
    for n, l in enumerate(lines):
        i = Ins(l)
        if i.cls in ('label', 'none'): continue
        if i.op == 's_sleep' and 'NOSKIP' not in l: skip = True
        if skip:
            if i.op == 's_branch': skip = False
            continue
        if i.op == 's_waitcnt':
            m = re.search(r'vmcnt\((\d+)\)', l)
            if m:
                k = int(m.group(1)); vm = vm[len(vm) - k:] if k < len(vm) else vm
                vt = vt[len(vt) - k:] if k < len(vt) else vt
                if k == 0: vm = []; vt = []
                mm = re.search(r'; N:(\S+)', l)
                if mm:
                    for tg in mm.group(1).split(','):
                        if tg in vt: errs.append(f'{name}:{n}: tag {tg} still in flight after: {l}')
                        if tg not in seen: errs.append(f'{name}:{n}: tag {tg} never issued before: {l}')
            m = re.search(r'lgkmcnt\((\d+)\)', l)
            if m:
                k = int(m.group(1))
                if k == 0: lg = []; smem_pending = set()
                else:
                    if smem_pending: errs.append(f'{name}:{n}: counted lgkmcnt with smem pending: {l}')
                    lg = lg[len(lg) - k:] if k < len(lg) else lg
            continue
        if i.op == 's_endpgm' or i.op == 's_branch':
            if 'KEEP' not in l: vm = []; lg = []; vt = []; smem_pending = set()
            continue
        touched = i.src | i.dst
        for q, nm in ((vm, 'vm'), (lg, 'lgkm')):
            for d in q:
                bad = d & touched
                if bad: errs.append(f'{name}:{n}: {nm} pending reg {sorted(bad)[:3]} touched by: {l}')
        bad = smem_pending & touched
        if bad: errs.append(f'{name}:{n}: smem pending {sorted(bad, key=str)[:3]} touched by: {l}')
        if i.cls == 'vmem' and i.op not in ('buffer_inv', 'buffer_wbl2'):
            vm.append(set(i.dst))
            mm = re.search(r'; T:(\S+)', l); vt.append(mm.group(1) if mm else None)
            if mm: seen.add(mm.group(1))
            if len(vm) > 63: errs.append(f'{name}:{n}: more than 63 vmem outstanding')
        elif i.cls == 'ds':
            lg.append(set(i.dst))
        elif i.cls == 'smem':
            smem_pending |= i.dst
    return errs

class Kern:
    def __init__(self, name):
        self.name = name; self.L = []; self.vm = []
        self.uid = 0
    track = True
    nissued = 0
    def __call__(self, s):
        for x in s.split('\n'):
            x = x.strip()
            if not x: continue
            self.L.append(x)
            if self.track:
                if (x.startswith('buffer_') or x.startswith('global_')):
                    m = re.search(r'; T:(\S+)', x); self.vm.append(m.group(1) if m else None); self.nissued += 1
                elif x.startswith('s_waitcnt'):
                    m = re.search(r'vmcnt\((\d+)\)', x)
                    if m:
                        n = int(m.group(1)); self.vm = self.vm[len(self.vm) - n:] if 0 < n < len(self.vm) else ([] if n == 0 else self.vm)
    def nvm(self, *tags):
        last = -1
        for i, t in enumerate(self.vm):
            if t in tags: last = i
        n = len(self.vm) - 1 - last
        assert n <= 63
        return n
    def waitvm(self, *tags, extra=''):
        if not tags:
            if extra.strip(): self(f's_waitcnt{extra}')
            return
        self(f's_waitcnt vmcnt({self.nvm(*tags)}){extra} ; N:{",".join(tags)}')
    def emit(self, lst):
        for x in lst: self(x)
    def lab(self, base):
        self.uid += 1
        return f'{self.name}_{base}_{self.uid}'

def interleave(main, side, every=1, start=0):
    out = []; side = list(side)
    for n, g in enumerate(main):
        out += g if isinstance(g, list) else [g]
        if n >= start and (n - start) % every == every - 1 and side:
            s = side.pop(0); out += s if isinstance(s, list) else [s]
    for s in side: out += s if isinstance(s, list) else [s]
    return out

def descriptor(name, vgpr, sgpr=102, acc=None):
    acc = acc if acc is not None else (vgpr + 3) // 4 * 4
    return f""".section .rodata,"a"
.p2align 6
.amdhsa_kernel {name}
  .amdhsa_next_free_vgpr {vgpr}
  .amdhsa_next_free_sgpr {sgpr}
  .amdhsa_accum_offset {acc}
  .amdhsa_group_segment_fixed_size 0
  .amdhsa_kernarg_size 136
  .amdhsa_user_sgpr_count 2
  .amdhsa_user_sgpr_kernarg_segment_ptr 1
  .amdhsa_system_sgpr_workgroup_id_x 1
.end_amdhsa_kernel
"""
```

```python
import os
from asmlib import *
from layout import *
OOB = 0x7ff00000
STAMP = False
WS_STAMP = 0x3000000

def srd(k, s, ptr_lo, size, off=0):
    if off:
        k(f's_add_u32 s{s}, s{ptr_lo}, {off}')
        k(f's_addc_u32 s{s+1}, s{ptr_lo+1}, 0')
        k(f's_and_b32 s{s+1}, s{s+1}, 0xffff')
    else:
        k(f's_mov_b32 s{s}, s{ptr_lo}')
        k(f's_and_b32 s{s+1}, s{ptr_lo+1}, 0xffff')
    k(f's_mov_b32 s{s+2}, {size}')
    k(f's_mov_b32 s{s+3}, 0x20000')

def tbfb(k, stb, sfb, t0, t1):
    k(f's_and_b32 s{t0}, s2, 7'); k(f's_lshr_b32 s{t1}, s2, 3')
    k(f's_and_b32 s{stb}, s{t0}, 1'); k(f's_lshl_b32 s{stb}, s{stb}, 3'); k(f's_and_b32 s{sfb}, s{t1}, 7'); k(f's_add_u32 s{stb}, s{stb}, s{sfb}')
    k(f's_lshr_b32 s{sfb}, s{t0}, 1'); k(f's_lshl_b32 s{sfb}, s{sfb}, 2'); k(f's_lshr_b32 s{t1}, s{t1}, 3'); k(f's_add_u32 s{sfb}, s{sfb}, s{t1}')

class VM:
    def __init__(self): self.q = []
    def add(self, tag, n=1): self.q += [tag] * n
    def wait(self, *tags):
        last = -1
        for i, t in enumerate(self.q):
            if t in tags: last = i
        n = len(self.q) - 1 - last
        self.q = self.q[last + 1:]
        assert n <= 63, n
        return n

def stamp_init(k, kidx, ws_lo):
    if not STAMP: return
    k(f's_add_u32 s96, s{ws_lo}, {WS_STAMP + kidx*0x80000}')
    k(f's_addc_u32 s97, s{ws_lo+1}, 0')
    k('s_lshl_b32 s98, s2, 11')
    k('s_add_u32 s96, s96, s98'); k('s_addc_u32 s97, s97, 0')
def stamp(k, idx, vt, wave_sgpr, vm=None):
    if not STAMP: return
    k('s_memrealtime s[98:99]')
    k('s_memtime s[100:101]')
    k('s_waitcnt lgkmcnt(0)')
    k(f'v_mov_b32 v{vt}, s98'); k(f'v_mov_b32 v{vt+1}, s100')
    k(f's_lshl_b32 s98, s{wave_sgpr}, 8')
    k(f'v_mov_b32 v{vt+2}, s98')
    k(f'global_store_dwordx2 v{vt+2}, v[{vt}:{vt+1}], s[96:97] offset:{idx*8}')
    if vm: vm.add('stamp')

GC0 = -2.0 * 0.7978845608028654 * 1.4426950408889634
GC1 = GC0 * 0.044715
import struct
def f2u(x): return struct.unpack('<I', struct.pack('<f', x))[0]
def gelu_stages(xs, ts, sC0, sC1):
    st = []
    st.append([f'v_mul_f32 v{t}, v{x}, v{x}' for x, t in zip(xs, ts)])
    st.append([f'v_fma_f32 v{t}, v{t}, s{sC1}, v{sC0}' for x, t in zip(xs, ts)])
    st.append([f'v_mul_f32 v{t}, v{t}, v{x}' for x, t in zip(xs, ts)])
    st.append([f'v_exp_f32 v{t}, v{t}' for t in ts])
    st.append([f'v_add_f32 v{t}, 1.0, v{t}' for t in ts])
    st.append([f'v_rcp_f32 v{t}, v{t}' for t in ts])
    st.append([f'v_mul_f32 v{x}, v{x}, v{t}' for x, t in zip(xs, ts)])
    return st

SF = os.environ.get('SF', '')

NAMES = {}
DBGST = os.environ.get('DBGST')
DN = ['loop1', 'q6', 'q12', 'loop1end', 'E3bar', 'S2ok', 'z2nst', 'E4bar', 'E4dbar', 'loop2', 'loop2end', 'hst', 'hack', 'S4ok', 'g3end', 'end', 'gelu', 'g3q4', 'g2s9', 'g2s55']
PROBE = os.environ.get('PROBE')
def probe_end(k):
    nm, wg = PROBE.split(':'); wg = int(wg)
    lb = k.lab('pb'); le = k.lab('pbe')
    k('s_cmp_eq_u32 s29, 0'); k(f's_cbranch_scc0 {le}')
    if wg >= 0:
        k(f's_cmp_eq_u32 s2, {wg}'); k(f's_cbranch_scc0 {le}')
    k('s_mul_i32 s100, s100, 10'); k('s_add_u32 s100, s100, 20000')
    k(f'{lb}:')
    k('s_memrealtime s[98:99]'); k('s_waitcnt lgkmcnt(0)'); k('s_sub_u32 s98, s98, s96'); k('s_cmp_lt_u32 s98, s100'); k(f's_cbranch_scc1 {lb}')
    k(f'{le}:')
def stp(k, name, vt, vm=None):
    if PROBE:
        if name == 'entry':
            k('s_memrealtime s[96:97]'); k('s_mov_b32 s100, 0')
        elif name == PROBE.split(':')[0]:
            k('s_memrealtime s[98:99]'); k('s_waitcnt lgkmcnt(0)'); k('s_sub_u32 s100, s98, s96')
        if name == 'end': probe_end(k)
        return
    if name == 'entry': return
    if DBGST is not None:
        if name == 'start':
            k('s_memrealtime s[96:97]'); k('s_waitcnt lgkmcnt(0)'); return
        if name not in DN: return
        i = DN.index(name); w = [1, 2, 3, 5, 6, 7, 9, 10, 11, 13, 14, 15][i // 2]
        lb = k.lab('ds')
        k('s_lshl_b32 s98, s2, 3'); k('s_add_u32 s98, s98, s29'); k(f's_cmp_eq_u32 s98, {int(DBGST) * 8}'); k(f's_cbranch_scc0 {lb}')
        k('s_load_dwordx2 s[100:101], s[0:1], 120')
        k('s_memrealtime s[98:99]'); k('s_waitcnt lgkmcnt(0)'); k('s_sub_u32 s98, s98, s96')
        k(f'v_mov_b32 v{vt}, s98'); k(f'v_mov_b32 v{vt+2}, 0')
        k(f'global_store_short v{vt+2}, v{vt}, s[100:101] offset:{w * 4 + (i % 2) * 2}')
        k(f'{lb}:')
        return
    if not STAMP: return
    if 'fine' in os.environ.get('EXP', '') and name not in ('start', 'E3bar', 'p2end', 'end'): return
    if name not in NAMES: NAMES[name] = len(NAMES)
    assert NAMES[name] < 32
    stamp(k, NAMES[name], vt, 29, vm)
    import json
    json.dump(NAMES, open('stamps.json', 'w'))
```
